```python
import torch

def _softmax(x, axis=-1):
    return torch.softmax(x, dim=axis)
def _gelu(x):
    return torch.nn.functional.gelu(x, approximate="tanh")
def _silu(x):
    return torch.nn.functional.silu(x)
def _sigmoid(x):
    return torch.sigmoid(x)
def _layernorm(x, axis=-1, eps=1e-5):
    m = x.mean(dim=axis, keepdim=True)
    v = x.var(dim=axis, keepdim=True, unbiased=False)
    return (x - m) / torch.sqrt(v + eps)
def _scatter_add(tgt, idx, src, axis=0):
    return tgt.clone().index_add_(axis, idx, src)
def _segment_sum(src, seg, n):
    out = torch.zeros((n,) + src.shape[1:], dtype=src.dtype)
    return out.index_add_(0, seg, src)
def _pad(x, pw):
    flat = tuple(v for pair in reversed(pw) for v in pair)
    return torch.nn.functional.pad(x, flat)

kernel_name = 'concat_heads__linear_attn_block__softmax_full_mha__prompt'

def setup_inputs():

    _w = (lambda a: (lambda t: t.to(torch.bfloat16) if t.is_floating_point() else t)(torch.as_tensor(a)))
    def _A_setup():
        B, S, D = 1, 2048, 1024
        return {
            "x": _w((lambda *s: torch.randn(*s, dtype=torch.bfloat16) * 0.05)(B, S, D)),
            "wqkv": _w((lambda *s: torch.randn(*s, dtype=torch.bfloat16) * 1.6)(D, 3 * D)),
            "wo": _w((lambda *s: torch.randn(*s, dtype=torch.bfloat16) * 0.1)(D, D)),
        }
    _A_in = _A_setup()

    def _B_setup():
        B, S, D = 1, 2048, 1024
        return {
            "x": _w((lambda *s: torch.randn(*s, dtype=torch.bfloat16) * 0.2)(B, S, D)),
            "wqkv": _w((lambda *s: torch.randn(*s, dtype=torch.bfloat16) * 0.2)(D, 3 * D)),
            "wo": _w((lambda *s: torch.randn(*s, dtype=torch.bfloat16) * 0.05)(D, D)),
        }
    _B_in = _B_setup()

    return {
        "A_x": _A_in["x"],
        "A_wqkv": _A_in["wqkv"],
        "A_wo": _A_in["wo"],
        "B_x": _B_in["x"],
        "B_wqkv": _B_in["wqkv"],
        "B_wo": _B_in["wo"],
    }

def reference(A_x, A_wqkv, A_wo, B_x, B_wqkv, B_wo):
    def _A_ref(x, wqkv, wo):
        B, S, D = x.shape
        H = 32; Dh = D // H
        qkv = (lambda x, *d: x.permute(*d))((x @ wqkv).reshape(B, S, 3, H, Dh), 2, 0, 3, 1, 4)
        q, k, v = qkv[0], qkv[1], qkv[2]
        phi = lambda t: torch.where(t > 0, t + 1, torch.exp(t)) + 1e-6
        pq, pk = phi(q), phi(k)
        kv = torch.einsum("bhsd,bhse->bhde", pk, v)
        z = torch.einsum("bhsd->bhd", pk)
        num = torch.einsum("bhqd,bhde->bhqe", pq, kv)
        den = torch.einsum("bhqd,bhd->bhq", pq, z)[..., None] + 1e-6
        o = num / den
        return (lambda x, *d: x.permute(*d))(o, 0, 2, 1, 3).reshape(B, S, D) @ wo

    def _B_ref(x, wqkv, wo):
        B, S, D = x.shape
        H = 32; Dh = D // H
        qkv = (lambda x, *d: x.permute(*d))((x @ wqkv).reshape(B, S, 3, H, Dh), 2, 0, 3, 1, 4)
        q, k, v = qkv[0], qkv[1], qkv[2]
        scale = Dh ** -0.5
        scores = torch.einsum("bhqd,bhkd->bhqk", q, k) * scale
        p = _softmax(scores, axis=-1)
        o = torch.einsum("bhqk,bhkd->bhqd", p, v)
        return (lambda x, *d: x.permute(*d))(o, 0, 2, 1, 3).reshape(B, S, D) @ wo

    a = _A_ref(A_x, A_wqkv, A_wo)
    b = _B_ref(B_x, B_wqkv, B_wo)
    return torch.concatenate([a, b], axis=-1)
```

```python
import sys, os, subprocess, struct
sys.path.insert(0, "cdna_kernels")
import numpy as np
from cdna_launch import AsmKernel, DeviceBuffer, with_harness_metadata, _hip, hip_check, pack_ptr_kernargs

def make_kernel(name, body_fn, iters, nvgpr=128, prologue=""):
    b = body_fn()
    if isinstance(b, tuple):
        bodyA, bodyB = b
    else:
        bodyA, bodyB = b, None
    s = []
    s.append(f"; @launch grid=(256,1,1) block=(1024,1,1) lds=0")
    s.append('.amdgcn_target "amdgcn-amd-amdhsa--gfx950"')
    s.append(".text")
    s.append(f".globl {name}")
    s.append(".p2align 8")
    s.append(f".type {name},@function")
    s.append(f"{name}:")
    s.append("  s_load_dwordx2 s[4:5], s[0:1], 0")
    s.append("  v_lshrrev_b32 v1, 6, v0")
    s.append("  s_nop 1")
    s.append("  v_readfirstlane_b32 s20, v1")
    for i in range(2, nvgpr):
        s.append(f"  v_mov_b32 v{i}, 0x3c003c00" if i % 2 else f"  v_mov_b32 v{i}, 0xbf800000")
    s.append(prologue)
    s.append("  s_waitcnt lgkmcnt(0)")
    s.append("  s_mov_b32 s8, s4")
    s.append("  s_mov_b32 s9, s5")
    s.append("  s_mov_b32 s10, 0x100000")
    s.append("  s_mov_b32 s11, 0x00020000")
    s.append(f"  s_mov_b32 s21, {iters}")
    s.append("  s_barrier")
    s.append("  s_memtime s[12:13]")
    s.append("  s_waitcnt lgkmcnt(0)")
    if bodyB is not None:
        s.append("  s_lshr_b32 s22, s20, 2")
        s.append("  s_and_b32 s22, s22, 1")
        s.append("  s_cmp_eq_u32 s22, 1")
        s.append("  s_cbranch_scc1 LB")
    s.append(".p2align 6")
    s.append("LA:")
    s += ["  " + x for x in bodyA]
    s.append("  s_sub_u32 s21, s21, 1")
    s.append("  s_cmp_lg_u32 s21, 0")
    s.append("  s_cbranch_scc1 LA")
    s.append("  s_branch LE")
    if bodyB is not None:
        s.append(".p2align 6")
        s.append("LB:")
        s += ["  " + x for x in bodyB]
        s.append("  s_sub_u32 s21, s21, 1")
        s.append("  s_cmp_lg_u32 s21, 0")
        s.append("  s_cbranch_scc1 LB")
    s.append("LE:")
    s.append("  s_memtime s[14:15]")
    s.append("  s_waitcnt lgkmcnt(0)")
    s.append("  s_sub_u32 s14, s14, s12")
    s.append("  s_lshl_b32 s3, s2, 4")
    s.append("  s_add_u32 s3, s3, s20")
    s.append("  s_lshl_b32 s3, s3, 2")
    s.append("  v_mov_b32 v1, s3")
    s.append("  v_mov_b32 v2, s14")
    s.append("  buffer_store_dword v2, v1, s[8:11], 0 offen")
    s.append("  s_waitcnt vmcnt(0)")
    s.append("  s_endpgm")
    s.append('.section .rodata,"a"')
    s.append(".p2align 6")
    s.append(f".amdhsa_kernel {name}")
    s.append(f"  .amdhsa_next_free_vgpr {nvgpr}")
    s.append("  .amdhsa_next_free_sgpr 40")
    s.append(f"  .amdhsa_accum_offset {nvgpr}")
    s.append("  .amdhsa_group_segment_fixed_size 0")
    s.append("  .amdhsa_kernarg_size 8")
    s.append("  .amdhsa_user_sgpr_count 2")
    s.append("  .amdhsa_user_sgpr_kernarg_segment_ptr 1")
    s.append("  .amdhsa_system_sgpr_workgroup_id_x 1")
    s.append(".end_amdhsa_kernel")
    return "\n".join(s) + "\n"

def build(name, asm):
    asm2 = with_harness_metadata(asm, name, 1)
    open(f"/tmp/{name}.s", "w").write(asm2)
    r = subprocess.run(["clang", "-x", "assembler", "-target", "amdgcn-amd-amdhsa", "-mcpu=gfx950",
                        f"/tmp/{name}.s", "-o", f"/tmp/{name}.co"], capture_output=True, text=True)
    if r.returncode != 0:
        print(r.stderr); raise SystemExit(1)
    return f"/tmp/{name}.co"

def run(name, body_fn, iters=200, blocks=(256, 512, 1024), grid=256, lds=0, nvgpr=128, prologue=""):
    asm = make_kernel(name, body_fn, iters, nvgpr, prologue)
    co = build(name, asm)
    if not os.path.exists('/dev/kfd'):
        print(name, "assembled"); return
    k = AsmKernel(co, name)
    out = DeviceBuffer(1 << 20)
    res = []
    for blk in blocks:
        for rep in range(2):
            hip_check(_hip.hipMemset(out._ptr, 0, 1 << 20))
            k.launch((grid, 1, 1), (blk, 1, 1), pack_ptr_kernargs([out.ptr]), lds)
            hip_check(_hip.hipDeviceSynchronize())
        o = out.to_numpy(np.uint32, (4096,)).reshape(256, 16)[:grid, :blk // 64]
        per = o.astype(np.float64) / iters
        nw = blk // 64
        if nw >= 8:
            a = per[:, [i for i in range(nw) if (i >> 2) & 1 == 0]]; b = per[:, [i for i in range(nw) if (i >> 2) & 1 == 1]]
            res.append(f"blk{blk}: A {np.median(a):.1f} B {np.median(b):.1f}")
        else:
            res.append(f"blk{blk}: {np.median(per):.1f}")
    print(f"{name:28s} cyc/iter  " + " | ".join(res), flush=True)
    k.unload()

def rep(fmt, n, base=8, stride=1, mod=64):
    return [fmt.format(d=base + (i * stride) % mod, d1=base + (i * stride) % mod + 1) for i in range(n)]

if __name__ == "__main__":
    run("fma64_kernel", lambda: rep("v_fma_f32 v{d}, v2, v3, v4", 64))
    run("add64_kernel", lambda: rep("v_add_f32 v{d}, v2, v3", 64))
    run("exp64_kernel", lambda: rep("v_exp_f32 v{d}, v2", 64))
    run("pkadd64_kernel", lambda: rep("v_pk_add_f32 v[{d}:{d1}], v[2:3], v[4:5]", 64, stride=2))
    run("pkfma64_kernel", lambda: rep("v_pk_fma_f32 v[{d}:{d1}], v[2:3], v[4:5], v[6:7]", 64, stride=2))
    run("cvtpk64_kernel", lambda: rep("v_cvt_pk_bf16_f32 v{d}, v2, v3", 64))
    run("perm64_kernel", lambda: rep("v_perm_b32 v{d}, v2, v3, v4", 64))
    run("max3_64_kernel", lambda: rep("v_max3_f32 v{d}, v2, v3, v4", 64))
    run("exp_vs_fma_kernel", lambda: (rep("v_exp_f32 v{d}, v2", 64), rep("v_fma_f32 v{d}, v2, v3, v4", 64)))
    run("exp_vs_fma2_kernel", lambda: (rep("v_exp_f32 v{d}, v2", 64), rep("v_fma_f32 v{d}, v2, v3, v4", 128)))
    def mix_exp_fma():
        o = []
        for i in range(32):
            o.append(f"v_exp_f32 v{8+i}, v2"); o.append(f"v_fma_f32 v{40+i}, v2, v3, v4")
        return o
    run("mix_exp_fma_kernel", mix_exp_fma)
    def mfma32(n=16):
        return [f"v_mfma_f32_32x32x16_bf16 v[{64+16*(i%4)}:{64+16*(i%4)+15}], v[4:7], v[8:11], v[{64+16*(i%4)}:{64+16*(i%4)+15}]" for i in range(n)]
    def mfma16(n=16):
        return [f"v_mfma_f32_16x16x32_bf16 v[{64+4*(i%4)}:{64+4*(i%4)+3}], v[4:7], v[8:11], v[{64+4*(i%4)}:{64+4*(i%4)+3}]" for i in range(n)]
    run("mfma32x16_kernel", lambda: mfma32(16))
    run("mfma16x16_kernel", lambda: mfma16(16))
    run("mfma_vs_exp_kernel", lambda: (mfma32(16), rep("v_exp_f32 v{d}, v2", 64, mod=32)))
    run("mfma_vs_fma_kernel", lambda: (mfma32(16), rep("v_fma_f32 v{d}, v2, v3, v4", 128, mod=32)))
    def attn_tile(nsum=2, nexp=16, ncvt=8, nm=4):
        m = mfma32(nm)
        s = [f"v_mfma_f32_16x16x32_bf16 v[56:59], v[4:7], v[8:11], v[56:59]" for i in range(nsum)]
        e = [f"v_exp_f32 v{12+i}, v2" for i in range(nexp)]
        c = [f"v_cvt_pk_bf16_f32 v{32+i}, v2, v3" for i in range(ncvt)]
        ms = []
        for i in range(max(nm, nsum)):
            if i < nm: ms.append(m[i])
            if i < nsum: ms.append(s[i])
        v = []
        ei = ci = 0
        while ei < nexp or ci < ncvt:
            for _ in range(2):
                if ei < nexp: v.append(e[ei]); ei += 1
            if ci < ncvt: v.append(c[ci]); ci += 1
        out = []
        n = len(ms)
        per = len(v) / n
        k = 0
        for i in range(n):
            out.append(ms[i])
            k2 = round(per * (i + 1))
            out += v[k:k2]; k = k2
        return out
    run("attn_tile_kernel", lambda: attn_tile() * 4)
    run("attn_tile_nosum_kernel", lambda: attn_tile(nsum=0) * 4)
    run("attn_tile_sum1_kernel", lambda: attn_tile(nsum=1) * 4)
    run("attn_tile_novalu_kernel", lambda: attn_tile(nsum=2, nexp=0, ncvt=0) * 4)
    run("attn_tile_nomfma_kernel", lambda: (rep("v_exp_f32 v{d}, v2", 16, mod=16) + rep("v_cvt_pk_bf16_f32 v{d}, v2, v3", 8, base=32)) * 4)
```

```python
import math, struct, sys

NAME = "concat_heads__linear_attn_block__softmax_full_mha__prompt"

WS_Q = 0x0000000
WS_KV = 0x0400000
WS_PQ = 0x0C00000
WS_O = 0x1000000
WS_KVP = 0x1800000
WS_ZP = 0x1900000
WS_FLAG = 0x1980000
WS_SIZE = 0x2000000


def f32(x):
    return "0x%08x" % struct.unpack("<I", struct.pack("<f", x))[0]


LOG2E = math.log2(math.e)
QSCALE = LOG2E * (32 ** -0.5)


class Asm:
    def __init__(self):
        self.l = []

    def __call__(self, s):
        self.l.append("    " + s)

    def label(self, s):
        self.l.append(s + ":")

    def raw(self, s):
        self.l.append(s)

    def c(self, s):
        self.l.append("    ; " + s)

    def text(self):
        return "\n".join(self.l) + "\n"


def vr(a, n=1):
    return f"v{a}" if n == 1 else f"v[{a}:{a+n-1}]"


def sr(a, n=1):
    return f"s{a}" if n == 1 else f"s[{a}:{a+n-1}]"


def mfma32(d, a, b, c):
    cs = c if isinstance(c, str) else vr(c, 16)
    return f"v_mfma_f32_32x32x16_bf16 {vr(d,16)}, {vr(a,4)}, {vr(b,4)}, {cs}"


def mfma16(d, a, b, c):
    cs = c if isinstance(c, str) else vr(c, 4)
    return f"v_mfma_f32_16x16x32_bf16 {vr(d,4)}, {vr(a,4)}, {vr(b,4)}, {cs}"


def interleave(main, fill, pattern=None):
    out = []
    n = len(main)
    k = 0
    for i, m in enumerate(main):
        out.append(m)
        k2 = pattern[i] if pattern else round(len(fill) * (i + 1) / n)
        for f in fill[k:k2]:
            out += f if isinstance(f, list) else [f]
        k = k2
    for f in fill[k:]:
        out += f if isinstance(f, list) else [f]
    return out


def kernel_header(a, name):
    a.raw(f".globl {name}")
    a.raw(".p2align 8")
    a.raw(f".type {name},@function")
    a.label(name)


def kernel_desc(a, name, nv, ns):
    a.raw(f".amdhsa_kernel {name}")
    a.raw(f"  .amdhsa_next_free_vgpr {nv}")
    a.raw(f"  .amdhsa_next_free_sgpr {ns if OPT['stamp'] == '0' else 90}")
    a.raw(f"  .amdhsa_accum_offset {(nv+3)//4*4}")
    a.raw("  .amdhsa_group_segment_fixed_size 0")
    a.raw("  .amdhsa_kernarg_size 72")
    a.raw("  .amdhsa_user_sgpr_count 2")
    a.raw("  .amdhsa_user_sgpr_kernarg_segment_ptr 1")
    a.raw("  .amdhsa_system_sgpr_workgroup_id_x 1")
    a.raw("  .amdhsa_float_denorm_mode_32 3")
    a.raw("  .amdhsa_float_denorm_mode_16_64 3")
    a.raw(".end_amdhsa_kernel")


def srd(a, d, base, size):
    a(f"s_mov_b32 s{d}, s{base}")
    a(f"s_and_b32 s{d+1}, s{base+1}, 0xffff")
    a(f"s_mov_b32 s{d+2}, {size}")
    a(f"s_mov_b32 s{d+3}, 0x00020000")


OPT = dict(st1=" sc1", st2=" sc1", st3=" sc1", q_pf="0", q_l2pf="2", q_l2init="0", stamp="0", at_nobar="0", at_prio="0", at_sched="0", at_nolds="0")
WS_STAMP = 0x1A00000


def stamp(a, idx):
    if OPT["stamp"] == "0":
        return
    a(f"s_memtime s[{60+2*idx}:{61+2*idx}]")
    if idx == 0:
        a("s_memrealtime s[76:77]")
        for r in range(62, 72):
            a(f"s_mov_b32 s{r}, 0")
    a("s_waitcnt lgkmcnt(0)")


def stamp_out(a, kidx, ssrd, vt, swv):
    if OPT["stamp"] == "0":
        return
    a("s_waitcnt vmcnt(0)")
    a("s_memtime s[72:73]")
    a("s_memrealtime s[78:79]")
    a("s_getreg_b32 s74, hwreg(HW_REG_HW_ID)")
    a("s_getreg_b32 s75, hwreg(HW_REG_XCC_ID)")
    a("s_waitcnt lgkmcnt(0)")
    a("s_lshl_b32 s80, s2, 4")
    a(f"s_add_u32 s80, s80, s{swv}")
    a("s_lshl_b32 s80, s80, 6")
    a(f"s_add_u32 s80, s80, {WS_STAMP + kidx*0x100000}")
    a("s_mov_b64 exec, 1")
    a(f"v_mov_b32 v{vt+4}, 0")
    regs = [60, 62, 64, 66, 68, 70, 72, 74, 75, 76, 78, 60]
    for g in range(3):
        for j in range(4):
            a(f"v_mov_b32 v{vt+j}, s{regs[4*g+j]}")
        a(f"buffer_store_dwordx4 v[{vt}:{vt+3}], v{vt+4}, s[{ssrd}:{ssrd+3}], s80 offen offset:{g*16}")
        a("s_nop 1")
```

```python
import sys, os
sys.path.insert(0, os.path.join(os.path.dirname(os.path.abspath(__file__)), "g"))
from common import *
for kv in sys.argv[2:]:
    k, v = kv.split("=", 1)
    OPT[k] = v
import importlib
qkv = importlib.import_module(OPT.get("m_qkv", "qkv"))
attn = importlib.import_module(OPT.get("m_attn", "attn"))
oproj = importlib.import_module(OPT.get("m_oproj", "oproj"))

HEADER = """; Kernarg layout for this problem (72 bytes, ptrs only, base s[0:1]):
"""


def generate():
    a = Asm()
    a.raw(HEADER.rstrip())
    a.raw(f"; @launch kernel=qkv_kernel grid=(256,1,1) block=(512,1,1) lds={qkv.QKV_LDS}")
    a.raw(f"; @launch kernel=attn_kernel grid=(256,1,1) block=(512,1,1) lds={attn.AT_LDS}")
    a.raw(f"; @launch kernel=oproj_kernel grid=(256,1,1) block=(512,1,1) lds={oproj.OP_LDS}")
    if OPT.get("twice", "0") == "1":
        a.raw(f"; @launch kernel=qkv_kernel grid=(256,1,1) block=(512,1,1) lds={qkv.QKV_LDS}")
        a.raw(f"; @launch kernel=attn_kernel grid=(256,1,1) block=(512,1,1) lds={attn.AT_LDS}")
        a.raw(f"; @launch kernel=oproj_kernel grid=(256,1,1) block=(512,1,1) lds={oproj.OP_LDS}")
    if OPT.get("probe"):
        a.raw(f"; @launch kernel=probe_kernel grid=(1,1,1) block=(256,1,1) lds=64")
    for i in range(int(OPT.get("empty", "0"))):
        a.raw(f"; @launch kernel=empty_kernel grid=(256,1,1) block=(512,1,1) lds=0")
    a.raw('.amdgcn_target "amdgcn-amd-amdhsa--gfx950"')
    a.raw(".text")
    ks = [qkv.gen_qkv(a), attn.gen_attn(a), oproj.gen_oproj(a)]
    if OPT.get("probe"):
        ka, kb, M = [int(x) for x in OPT["probe"].split(",")]
        kernel_header(a, "probe_kernel")
        a("s_cmp_ge_u32 s2, 1")
        a("s_cbranch_scc1 L_pr_end")
        a("s_load_dwordx2 s[8:9], s[0:1], 64")
        a("v_lshlrev_b32 v1, 10, v0")
        a("v_mov_b32 v2, 0")
        a("v_mov_b32 v3, -1")
        a("ds_write_b32 v2, v3")
        a("ds_write_b32 v2, v2 offset:4")
        a("s_waitcnt lgkmcnt(0)")
        srd(a, 12, 8, WS_SIZE)
        a(f"s_mov_b32 s20, {WS_STAMP + ka*0x100000}")
        a(f"s_mov_b32 s21, {WS_STAMP + kb*0x100000}")
        for w in range(8):
            a(f"buffer_load_dword v{8+w}, v1, s[12:15], s20 offen offset:{w*64+36}")
            a(f"buffer_load_dword v{16+w}, v1, s[12:15], s21 offen offset:{w*64+40}")
        a("s_waitcnt vmcnt(0)")
        for w in range(1, 8):
            a(f"v_min_u32 v8, v8, v{8+w}")
            a(f"v_max_u32 v16, v16, v{16+w}")
        a("s_barrier")
        a("ds_min_u32 v2, v8")
        a("ds_max_u32 v2, v16 offset:4")
        a("s_waitcnt lgkmcnt(0)")
        a("s_barrier")
        a("ds_read_b64 v[4:5], v2")
        a("s_waitcnt lgkmcnt(0)")
        a("v_sub_u32 v4, v5, v4")
        a("s_nop 1")
        a("v_readfirstlane_b32 s22, v4")
        a("s_nop 3")
        a("s_min_u32 s22, s22, 20000")
        a(f"s_mul_i32 s22, s22, {M}")
        a("s_memrealtime s[24:25]")
        a("s_waitcnt lgkmcnt(0)")
        a.label("L_pr_spin")
        a("s_memrealtime s[26:27]")
        a("s_waitcnt lgkmcnt(0)")
        a("s_sub_u32 s28, s26, s24")
        a("s_cmp_lt_u32 s28, s22")
        a("s_cbranch_scc1 L_pr_spin")
        a.label("L_pr_end")
        a("s_endpgm")
        ks.append(("probe_kernel", 32, 40))
    if int(OPT.get("empty", "0")):
        kernel_header(a, "empty_kernel")
        a("s_endpgm")
        ks.append(("empty_kernel", 8, 8))
    a.raw('.section .rodata,"a"')
    for name, nv, ns in ks:
        a.raw(".p2align 6")
        kernel_desc(a, name, nv, ns)
    return a.text()


if __name__ == "__main__":
    out = sys.argv[1] if len(sys.argv) > 1 else f"cdna_kernels/{NAME}.s"
    open(out, "w").write(generate())
    print("wrote", out)
```

```python
import sys, os
sys.path.insert(0, os.path.join(os.path.dirname(os.path.abspath(__file__)), "g"))
from common import *
for kv in sys.argv[2:]:
    k, v = kv.split("=", 1)
    OPT[k] = v
import importlib
qkv = importlib.import_module(OPT.get("m_qkv", "qkv3"))
attn = importlib.import_module(OPT.get("m_attn", "attn5"))
oproj = importlib.import_module(OPT.get("m_oproj", "oproj3"))

HEADER = """; Kernarg layout for this problem (72 bytes, ptrs only, base s[0:1]):
"""


def generate():
    a = Asm()
    a.raw(HEADER.rstrip())
    a.raw(f"; @launch kernel=qkv_kernel grid=(256,1,1) block=(512,1,1) lds={qkv.QKV_LDS}")
    a.raw(f"; @launch kernel=attn_kernel grid=(256,1,1) block=(512,1,1) lds={attn.AT_LDS}")
    a.raw(f"; @launch kernel=oproj_kernel grid=(256,1,1) block=(512,1,1) lds={oproj.OP_LDS}")
    if OPT.get("twice", "0") == "1":
        a.raw(f"; @launch kernel=qkv_kernel grid=(256,1,1) block=(512,1,1) lds={qkv.QKV_LDS}")
        a.raw(f"; @launch kernel=attn_kernel grid=(256,1,1) block=(512,1,1) lds={attn.AT_LDS}")
        a.raw(f"; @launch kernel=oproj_kernel grid=(256,1,1) block=(512,1,1) lds={oproj.OP_LDS}")
    if OPT.get("probe"):
        a.raw(f"; @launch kernel=probe_kernel grid=(1,1,1) block=(256,1,1) lds=64")
    for i in range(int(OPT.get("empty", "0"))):
        a.raw(f"; @launch kernel=empty_kernel grid=(256,1,1) block=(512,1,1) lds=0")
    a.raw('.amdgcn_target "amdgcn-amd-amdhsa--gfx950"')
    a.raw(".text")
    ks = [qkv.gen_qkv(a), attn.gen_attn(a), oproj.gen_oproj(a)]
    if OPT.get("probe"):
        pp = [int(x) for x in OPT["probe"].split(",")]
        ka, kb, M = pp[:3]
        da, db, cyc = (pp[3:6] if len(pp) > 3 else (9, 10, 0))
        kernel_header(a, "probe_kernel")
        a("s_cmp_ge_u32 s2, 1")
        a("s_cbranch_scc1 L_pr_end")
        a("s_load_dwordx2 s[8:9], s[0:1], 64")
        a("v_lshlrev_b32 v1, 10, v0")
        a("v_mov_b32 v2, 0")
        a("v_mov_b32 v3, -1")
        a("ds_write_b32 v2, v3")
        a("ds_write_b32 v2, v2 offset:4")
        a("s_waitcnt lgkmcnt(0)")
        srd(a, 12, 8, WS_SIZE)
        a(f"s_mov_b32 s20, {WS_STAMP + ka*0x100000}")
        a(f"s_mov_b32 s21, {WS_STAMP + kb*0x100000}")
        for w in range(8):
            a(f"buffer_load_dword v{8+w}, v1, s[12:15], s20 offen offset:{w*64+4*da}")
            a(f"buffer_load_dword v{16+w}, v1, s[12:15], s21 offen offset:{w*64+4*db}")
        a("s_waitcnt vmcnt(0)")
        if cyc:
            for w in range(8):
                a(f"v_sub_u32 v{16+w}, v{16+w}, v{8+w}")
                a(f"v_lshrrev_b32 v{16+w}, 4, v{16+w}")
                a(f"v_mov_b32 v{8+w}, 0")
        for w in range(1, 8):
            a(f"v_min_u32 v8, v8, v{8+w}")
            a(f"v_max_u32 v16, v16, v{16+w}")
        a("s_barrier")
        a("ds_min_u32 v2, v8")
        a("ds_max_u32 v2, v16 offset:4")
        a("s_waitcnt lgkmcnt(0)")
        a("s_barrier")
        a("ds_read_b64 v[4:5], v2")
        a("s_waitcnt lgkmcnt(0)")
        a("v_sub_u32 v4, v5, v4")
        a("s_nop 1")
        a("v_readfirstlane_b32 s22, v4")
        a("s_nop 3")
        a("s_min_u32 s22, s22, 20000")
        a(f"s_mul_i32 s22, s22, {M}")
        a("s_memrealtime s[24:25]")
        a("s_waitcnt lgkmcnt(0)")
        a.label("L_pr_spin")
        a("s_memrealtime s[26:27]")
        a("s_waitcnt lgkmcnt(0)")
        a("s_sub_u32 s28, s26, s24")
        a("s_cmp_lt_u32 s28, s22")
        a("s_cbranch_scc1 L_pr_spin")
        a.label("L_pr_end")
        a("s_endpgm")
        ks.append(("probe_kernel", 32, 40))
    if int(OPT.get("empty", "0")):
        kernel_header(a, "empty_kernel")
        a("s_endpgm")
        ks.append(("empty_kernel", 8, 8))
    a.raw('.section .rodata,"a"')
    for name, nv, ns in ks:
        a.raw(".p2align 6")
        kernel_desc(a, name, nv, ns)
    return a.text()


if __name__ == "__main__":
    out = sys.argv[1] if len(sys.argv) > 1 else f"cdna_kernels/{NAME}.s"
    open(out, "w").write(generate())
    print("wrote", out)
```

```python
import sys, os
sys.path.insert(0, os.path.join(os.path.dirname(os.path.abspath(__file__)), "g"))
from common import *
for kv in sys.argv[2:]:
    k, v = kv.split("=", 1)
    OPT[k] = v
import importlib
qkv = importlib.import_module(OPT.get("m_qkv", "qkv3"))
attn = importlib.import_module(OPT.get("m_attn", "attn5"))
oproj = importlib.import_module(OPT.get("m_oproj", "oproj3"))

HEADER = """; Kernarg layout for this problem (72 bytes, ptrs only, base s[0:1]):
"""


def generate():
    a = Asm()
    a.raw(HEADER.rstrip())
    a.raw(f"; @launch kernel=qkv_kernel grid=(256,1,1) block=(512,1,1) lds={qkv.QKV_LDS}")
    a.raw(f"; @launch kernel=attn_kernel grid=(256,1,1) block=(512,1,1) lds={attn.AT_LDS}")
    merged = getattr(attn, "MERGED", False)
    if not merged:
        a.raw(f"; @launch kernel=oproj_kernel grid=(256,1,1) block=(512,1,1) lds={oproj.OP_LDS}")
    if OPT.get("twice", "0") == "1":
        a.raw(f"; @launch kernel=qkv_kernel grid=(256,1,1) block=(512,1,1) lds={qkv.QKV_LDS}")
        a.raw(f"; @launch kernel=attn_kernel grid=(256,1,1) block=(512,1,1) lds={attn.AT_LDS}")
        a.raw(f"; @launch kernel=oproj_kernel grid=(256,1,1) block=(512,1,1) lds={oproj.OP_LDS}")
    if OPT.get("probe"):
        a.raw(f"; @launch kernel=probe_kernel grid=(1,1,1) block=(256,1,1) lds=64")
    for i in range(int(OPT.get("empty", "0"))):
        a.raw(f"; @launch kernel=empty_kernel grid=(256,1,1) block=(512,1,1) lds=0")
    a.raw('.amdgcn_target "amdgcn-amd-amdhsa--gfx950"')
    a.raw(".text")
    ks = [qkv.gen_qkv(a), attn.gen_attn(a)] + ([] if merged else [oproj.gen_oproj(a)])
    if OPT.get("probe"):
        pp = [int(x) for x in OPT["probe"].split(",")]
        ka, kb, M = pp[:3]
        da, db, cyc = (pp[3:6] if len(pp) > 3 else (9, 10, 0))
        kernel_header(a, "probe_kernel")
        a("s_cmp_ge_u32 s2, 1")
        a("s_cbranch_scc1 L_pr_end")
        a("s_load_dwordx2 s[8:9], s[0:1], 64")
        a("v_lshlrev_b32 v1, 10, v0")
        a("v_mov_b32 v2, 0")
        a("v_mov_b32 v3, -1")
        a("ds_write_b32 v2, v3")
        a("ds_write_b32 v2, v2 offset:4")
        a("s_waitcnt lgkmcnt(0)")
        srd(a, 12, 8, WS_SIZE)
        a(f"s_mov_b32 s20, {WS_STAMP + ka*0x100000}")
        a(f"s_mov_b32 s21, {WS_STAMP + kb*0x100000}")
        for w in range(8):
            a(f"buffer_load_dword v{8+w}, v1, s[12:15], s20 offen offset:{w*64+4*da}")
            a(f"buffer_load_dword v{16+w}, v1, s[12:15], s21 offen offset:{w*64+4*db}")
        a("s_waitcnt vmcnt(0)")
        if cyc:
            for w in range(8):
                a(f"v_sub_u32 v{16+w}, v{16+w}, v{8+w}")
                a(f"v_lshrrev_b32 v{16+w}, 4, v{16+w}")
                a(f"v_mov_b32 v{8+w}, 0")
        for w in range(1, 8):
            a(f"v_min_u32 v8, v8, v{8+w}")
            a(f"v_max_u32 v16, v16, v{16+w}")
        a("s_barrier")
        a("ds_min_u32 v2, v8")
        a("ds_max_u32 v2, v16 offset:4")
        a("s_waitcnt lgkmcnt(0)")
        a("s_barrier")
        a("ds_read_b64 v[4:5], v2")
        a("s_waitcnt lgkmcnt(0)")
        a("v_sub_u32 v4, v5, v4")
        a("s_nop 1")
        a("v_readfirstlane_b32 s22, v4")
        a("s_nop 3")
        a("s_min_u32 s22, s22, 20000")
        a(f"s_mul_i32 s22, s22, {M}")
        a("s_memrealtime s[24:25]")
        a("s_waitcnt lgkmcnt(0)")
        a.label("L_pr_spin")
        a("s_memrealtime s[26:27]")
        a("s_waitcnt lgkmcnt(0)")
        a("s_sub_u32 s28, s26, s24")
        a("s_cmp_lt_u32 s28, s22")
        a("s_cbranch_scc1 L_pr_spin")
        a.label("L_pr_end")
        a("s_endpgm")
        ks.append(("probe_kernel", 32, 40))
    if int(OPT.get("empty", "0")):
        kernel_header(a, "empty_kernel")
        a("s_endpgm")
        ks.append(("empty_kernel", 8, 8))
    a.raw('.section .rodata,"a"')
    for name, nv, ns in ks:
        a.raw(".p2align 6")
        kernel_desc(a, name, nv, ns)
    return a.text()


if __name__ == "__main__":
    out = sys.argv[1] if len(sys.argv) > 1 else f"cdna_kernels/{NAME}.s"
    open(out, "w").write(generate())
    print("wrote", out)
```

```python
import math, struct, sys

NAME = "concat_heads__linear_attn_block__softmax_full_mha__prompt"

WS_Q = 0x0000000
WS_KV = 0x0400000
WS_PQ = 0x0C00000
WS_O = 0x1000000
WS_KVP = 0x1800000
WS_ZP = 0x1900000
WS_FLAG = 0x1980000
WS_FLAG1 = 0x1990000
WS_EPOCH = 0x19A0000
WS_SIZE = 0x2000000
sTAG, sF1 = 82, 83


def f32(x):
    return "0x%08x" % struct.unpack("<I", struct.pack("<f", x))[0]


LOG2E = math.log2(math.e)
QSCALE = LOG2E * (32 ** -0.5)


class Asm:
    def __init__(self):
        self.l = []

    def __call__(self, s):
        self.l.append("    " + s)

    def label(self, s):
        self.l.append(s + ":")

    def raw(self, s):
        self.l.append(s)

    def c(self, s):
        self.l.append("    ; " + s)

    def text(self):
        return "\n".join(self.l) + "\n"


def vr(a, n=1):
    return f"v{a}" if n == 1 else f"v[{a}:{a+n-1}]"


def sr(a, n=1):
    return f"s{a}" if n == 1 else f"s[{a}:{a+n-1}]"


def mfma32(d, a, b, c):
    cs = c if isinstance(c, str) else vr(c, 16)
    return f"v_mfma_f32_32x32x16_bf16 {vr(d,16)}, {vr(a,4)}, {vr(b,4)}, {cs}"


def mfma16(d, a, b, c):
    cs = c if isinstance(c, str) else vr(c, 4)
    return f"v_mfma_f32_16x16x32_bf16 {vr(d,4)}, {vr(a,4)}, {vr(b,4)}, {cs}"


def interleave(main, fill, pattern=None):
    out = []
    n = len(main)
    k = 0
    for i, m in enumerate(main):
        out.append(m)
        k2 = pattern[i] if pattern else round(len(fill) * (i + 1) / n)
        for f in fill[k:k2]:
            out += f if isinstance(f, list) else [f]
        k = k2
    for f in fill[k:]:
        out += f if isinstance(f, list) else [f]
    return out


def kernel_header(a, name):
    a.raw(f".globl {name}")
    a.raw(".p2align 8")
    a.raw(f".type {name},@function")
    a.label(name)


def kernel_desc(a, name, nv, ns):
    a.raw(f".amdhsa_kernel {name}")
    a.raw(f"  .amdhsa_next_free_vgpr {nv}")
    a.raw(f"  .amdhsa_next_free_sgpr {max(ns, 90) if OPT['stamp'] != '0' else ns}")
    a.raw(f"  .amdhsa_accum_offset {(nv+3)//4*4}")
    a.raw("  .amdhsa_group_segment_fixed_size 0")
    a.raw("  .amdhsa_kernarg_size 72")
    a.raw("  .amdhsa_user_sgpr_count 2")
    a.raw("  .amdhsa_user_sgpr_kernarg_segment_ptr 1")
    a.raw("  .amdhsa_system_sgpr_workgroup_id_x 1")
    a.raw("  .amdhsa_float_denorm_mode_32 3")
    a.raw("  .amdhsa_float_denorm_mode_16_64 3")
    a.raw(".end_amdhsa_kernel")


def srd(a, d, base, size):
    a(f"s_mov_b32 s{d}, s{base}")
    a(f"s_and_b32 s{d+1}, s{base+1}, 0xffff")
    a(f"s_mov_b32 s{d+2}, {size}")
    a(f"s_mov_b32 s{d+3}, 0x00020000")


OPT = dict(st1=" sc1", st2=" sc1", st3=" sc1", flagm="3", q_pf="1", q_l2pf="0", q_l2init="0", stamp="0", at_nobar="0", at_prio="0", at_sched="0", at_nolds="0")
WS_STAMP = 0x1A00000


def stamp(a, idx):
    if OPT["stamp"] == "0":
        return
    a(f"s_memtime s[{60+2*idx}:{61+2*idx}]")
    if idx == 0:
        a("s_memrealtime s[76:77]")
        for r in range(62, 72):
            a(f"s_mov_b32 s{r}, 0")
    a("s_waitcnt lgkmcnt(0)")


def stamp_out(a, kidx, ssrd, vt, swv):
    if OPT["stamp"] == "0":
        return
    a("s_waitcnt vmcnt(0)")
    a("s_memtime s[72:73]")
    a("s_memrealtime s[78:79]")
    a("s_getreg_b32 s74, hwreg(HW_REG_HW_ID)")
    a("s_getreg_b32 s75, hwreg(HW_REG_XCC_ID)")
    a("s_waitcnt lgkmcnt(0)")
    a("s_lshl_b32 s80, s2, 4")
    a(f"s_add_u32 s80, s80, s{swv}")
    a("s_lshl_b32 s80, s80, 6")
    a(f"s_add_u32 s80, s80, {WS_STAMP + kidx*0x100000}")
    a("s_mov_b64 exec, 1")
    a(f"v_mov_b32 v{vt+4}, 0")
    regs = [60, 62, 64, 66, 68, 70, 72, 74, 75, 76, 78, 60]
    for g in range(3):
        for j in range(4):
            a(f"v_mov_b32 v{vt+j}, s{regs[4*g+j]}")
        a(f"buffer_store_dwordx4 v[{vt}:{vt+3}], v{vt+4}, s[{ssrd}:{ssrd+3}], s80 offen offset:{g*16}")
        a("s_nop 1")
```

```python
import sys, os
sys.path.insert(0, os.path.join(os.path.dirname(os.path.abspath(__file__)), "g"))
from common import *
for kv in sys.argv[2:]:
    k, v = kv.split("=", 1)
    OPT[k] = v
import importlib
qkv = importlib.import_module(OPT.get("m_qkv", "qkv3"))
attn = importlib.import_module(OPT.get("m_attn", "attn5"))
oproj = importlib.import_module(OPT.get("m_oproj", "oproj3"))

HEADER = """; Kernarg layout for this problem (72 bytes, ptrs only, base s[0:1]):
"""


def generate():
    a = Asm()
    a.raw(HEADER.rstrip())
    if getattr(attn, "FUSED", False):
        a.raw(f"; @launch kernel={NAME}_kernel grid=(256,1,1) block=(512,1,1) lds={max(qkv.QKV_LDS, attn.AT_LDS)}")
        a.raw('.amdgcn_target "amdgcn-amd-amdhsa--gfx950"')
        a.raw(".text")
        k1, k2 = qkv.gen_qkv(a), attn.gen_attn(a)
        a.raw('.section .rodata,"a"')
        a.raw(".p2align 6")
        kernel_desc(a, k1[0], max(k1[1], k2[1]), max(k1[2], k2[2]))
        return a.text()
    a.raw(f"; @launch kernel=qkv_kernel grid=(256,1,1) block=(512,1,1) lds={qkv.QKV_LDS}")
    a.raw(f"; @launch kernel=attn_kernel grid=(256,1,1) block=(512,1,1) lds={attn.AT_LDS}")
    merged = getattr(attn, "MERGED", False)
    if not merged:
        a.raw(f"; @launch kernel=oproj_kernel grid=(256,1,1) block=(512,1,1) lds={oproj.OP_LDS}")
    if OPT.get("twice", "0") == "1":
        a.raw(f"; @launch kernel=qkv_kernel grid=(256,1,1) block=(512,1,1) lds={qkv.QKV_LDS}")
        a.raw(f"; @launch kernel=attn_kernel grid=(256,1,1) block=(512,1,1) lds={attn.AT_LDS}")
        a.raw(f"; @launch kernel=oproj_kernel grid=(256,1,1) block=(512,1,1) lds={oproj.OP_LDS}")
    if OPT.get("probe"):
        a.raw(f"; @launch kernel=probe_kernel grid=(1,1,1) block=(256,1,1) lds=64")
    for i in range(int(OPT.get("empty", "0"))):
        a.raw(f"; @launch kernel=empty_kernel grid=(256,1,1) block=(512,1,1) lds=0")
    a.raw('.amdgcn_target "amdgcn-amd-amdhsa--gfx950"')
    a.raw(".text")
    ks = [qkv.gen_qkv(a), attn.gen_attn(a)] + ([] if merged else [oproj.gen_oproj(a)])
    if OPT.get("probe"):
        pp = [int(x) for x in OPT["probe"].split(",")]
        ka, kb, M = pp[:3]
        da, db, cyc = (pp[3:6] if len(pp) > 3 else (9, 10, 0))
        kernel_header(a, "probe_kernel")
        a("s_cmp_ge_u32 s2, 1")
        a("s_cbranch_scc1 L_pr_end")
        a("s_load_dwordx2 s[8:9], s[0:1], 64")
        a("v_lshlrev_b32 v1, 10, v0")
        a("v_mov_b32 v2, 0")
        a("v_mov_b32 v3, -1")
        a("ds_write_b32 v2, v3")
        a("ds_write_b32 v2, v2 offset:4")
        a("s_waitcnt lgkmcnt(0)")
        srd(a, 12, 8, WS_SIZE)
        a(f"s_mov_b32 s20, {WS_STAMP + ka*0x100000}")
        a(f"s_mov_b32 s21, {WS_STAMP + kb*0x100000}")
        for w in range(8):
            a(f"buffer_load_dword v{8+w}, v1, s[12:15], s20 offen offset:{w*64+4*da}")
            a(f"buffer_load_dword v{16+w}, v1, s[12:15], s21 offen offset:{w*64+4*db}")
        a("s_waitcnt vmcnt(0)")
        if cyc:
            for w in range(8):
                a(f"v_sub_u32 v{16+w}, v{16+w}, v{8+w}")
                a(f"v_lshrrev_b32 v{16+w}, 4, v{16+w}")
                a(f"v_mov_b32 v{8+w}, 0")
        for w in range(1, 8):
            a(f"v_min_u32 v8, v8, v{8+w}")
            a(f"v_max_u32 v16, v16, v{16+w}")
        a("s_barrier")
        a("ds_min_u32 v2, v8")
        a("ds_max_u32 v2, v16 offset:4")
        a("s_waitcnt lgkmcnt(0)")
        a("s_barrier")
        a("ds_read_b64 v[4:5], v2")
        a("s_waitcnt lgkmcnt(0)")
        a("v_sub_u32 v4, v5, v4")
        a("s_nop 1")
        a("v_readfirstlane_b32 s22, v4")
        a("s_nop 3")
        a("s_min_u32 s22, s22, 20000")
        a(f"s_mul_i32 s22, s22, {M}")
        a("s_memrealtime s[24:25]")
        a("s_waitcnt lgkmcnt(0)")
        a.label("L_pr_spin")
        a("s_memrealtime s[26:27]")
        a("s_waitcnt lgkmcnt(0)")
        a("s_sub_u32 s28, s26, s24")
        a("s_cmp_lt_u32 s28, s22")
        a("s_cbranch_scc1 L_pr_spin")
        a.label("L_pr_end")
        a("s_endpgm")
        ks.append(("probe_kernel", 32, 40))
    if int(OPT.get("empty", "0")):
        kernel_header(a, "empty_kernel")
        a("s_endpgm")
        ks.append(("empty_kernel", 8, 8))
    a.raw('.section .rodata,"a"')
    for name, nv, ns in ks:
        a.raw(".p2align 6")
        kernel_desc(a, name, nv, ns)
    return a.text()


if __name__ == "__main__":
    out = sys.argv[1] if len(sys.argv) > 1 else f"cdna_kernels/{NAME}.s"
    open(out, "w").write(generate())
    print("wrote", out)
```

```python
import sys, os
sys.path.insert(0, os.path.join(os.path.dirname(os.path.abspath(__file__)), "g"))
from common import *
for kv in sys.argv[2:]:
    k, v = kv.split("=", 1)
    OPT[k] = v
import importlib
qkv = importlib.import_module(OPT.get("m_qkv", "qkv7"))
attn = importlib.import_module(OPT.get("m_attn", "attn8"))
oproj = importlib.import_module(OPT.get("m_oproj", "oproj3"))

HEADER = """; Kernarg layout for this problem (72 bytes, ptrs only, base s[0:1]):
"""


def gen_probe(a, ks):
    if OPT.get("probe"):
        pp = [int(x) for x in OPT["probe"].split(",")]
        ka, kb, M = pp[:3]
        da, db, cyc = (pp[3:6] if len(pp) > 3 else (9, 10, 0))
        kernel_header(a, "probe_kernel")
        a("s_cmp_ge_u32 s2, 1")
        a("s_cbranch_scc1 L_pr_end")
        a("s_load_dwordx2 s[8:9], s[0:1], 64")
        a("v_lshlrev_b32 v1, 10, v0")
        a("v_mov_b32 v2, 0")
        a("v_mov_b32 v3, -1")
        a("ds_write_b32 v2, v3")
        a("ds_write_b32 v2, v2 offset:4")
        a("s_waitcnt lgkmcnt(0)")
        srd(a, 12, 8, WS_SIZE)
        a(f"s_mov_b32 s20, {WS_STAMP + ka*0x100000}")
        a(f"s_mov_b32 s21, {WS_STAMP + kb*0x100000}")
        for w in range(8):
            a(f"buffer_load_dword v{8+w}, v1, s[12:15], s20 offen offset:{w*64+4*da}")
            a(f"buffer_load_dword v{16+w}, v1, s[12:15], s21 offen offset:{w*64+4*db}")
        a("s_waitcnt vmcnt(0)")
        if cyc:
            for w in range(8):
                a(f"v_sub_u32 v{16+w}, v{16+w}, v{8+w}")
                a(f"v_lshrrev_b32 v{16+w}, 4, v{16+w}")
                a(f"v_mov_b32 v{8+w}, 0")
        for w in range(1, 8):
            a(f"v_min_u32 v8, v8, v{8+w}")
            a(f"v_max_u32 v16, v16, v{16+w}")
        a("s_barrier")
        a("ds_min_u32 v2, v8")
        a("ds_max_u32 v2, v16 offset:4")
        a("s_waitcnt lgkmcnt(0)")
        a("s_barrier")
        a("ds_read_b64 v[4:5], v2")
        a("s_waitcnt lgkmcnt(0)")
        a("v_sub_u32 v4, v5, v4")
        a("s_nop 1")
        a("v_readfirstlane_b32 s22, v4")
        a("s_nop 3")
        a("s_min_u32 s22, s22, 20000")
        a(f"s_mul_i32 s22, s22, {M}")
        a("s_memrealtime s[24:25]")
        a("s_waitcnt lgkmcnt(0)")
        a.label("L_pr_spin")
        a("s_memrealtime s[26:27]")
        a("s_waitcnt lgkmcnt(0)")
        a("s_sub_u32 s28, s26, s24")
        a("s_cmp_lt_u32 s28, s22")
        a("s_cbranch_scc1 L_pr_spin")
        a.label("L_pr_end")
        a("s_endpgm")
        ks.append(("probe_kernel", 32, 40))


def generate():
    a = Asm()
    a.raw(HEADER.rstrip())
    if getattr(attn, "FUSED", False):
        kn = "" if OPT.get("plain") else f"kernel={NAME}_kernel "
        a.raw(f"; @launch {kn}grid=(256,1,1) block=(512,1,1) lds={max(qkv.QKV_LDS, attn.AT_LDS)}")
        if OPT.get("probe"):
            a.raw(f"; @launch kernel=probe_kernel grid=(1,1,1) block=(256,1,1) lds=64")
        a.raw('.amdgcn_target "amdgcn-amd-amdhsa--gfx950"')
        a.raw(".text")
        k1, k2 = qkv.gen_qkv(a), attn.gen_attn(a)
        ks = [(k1[0], max(k1[1], k2[1]), max(k1[2], k2[2]))]
        gen_probe(a, ks)
        a.raw('.section .rodata,"a"')
        for name, nv, ns in ks:
            a.raw(".p2align 6")
            kernel_desc(a, name, nv, ns)
        return a.text()
    a.raw(f"; @launch kernel=qkv_kernel grid=(256,1,1) block=(512,1,1) lds={qkv.QKV_LDS}")
    a.raw(f"; @launch kernel=attn_kernel grid=(256,1,1) block=(512,1,1) lds={attn.AT_LDS}")
    merged = getattr(attn, "MERGED", False)
    if not merged:
        a.raw(f"; @launch kernel=oproj_kernel grid=(256,1,1) block=(512,1,1) lds={oproj.OP_LDS}")
    if OPT.get("twice", "0") == "1":
        a.raw(f"; @launch kernel=qkv_kernel grid=(256,1,1) block=(512,1,1) lds={qkv.QKV_LDS}")
        a.raw(f"; @launch kernel=attn_kernel grid=(256,1,1) block=(512,1,1) lds={attn.AT_LDS}")
        a.raw(f"; @launch kernel=oproj_kernel grid=(256,1,1) block=(512,1,1) lds={oproj.OP_LDS}")
    if OPT.get("probe"):
        a.raw(f"; @launch kernel=probe_kernel grid=(1,1,1) block=(256,1,1) lds=64")
    for i in range(int(OPT.get("empty", "0"))):
        a.raw(f"; @launch kernel=empty_kernel grid=(256,1,1) block=(512,1,1) lds=0")
    a.raw('.amdgcn_target "amdgcn-amd-amdhsa--gfx950"')
    a.raw(".text")
    ks = [qkv.gen_qkv(a), attn.gen_attn(a)] + ([] if merged else [oproj.gen_oproj(a)])
    gen_probe(a, ks)
    if int(OPT.get("empty", "0")):
        kernel_header(a, "empty_kernel")
        a("s_endpgm")
        ks.append(("empty_kernel", 8, 8))
    a.raw('.section .rodata,"a"')
    for name, nv, ns in ks:
        a.raw(".p2align 6")
        kernel_desc(a, name, nv, ns)
    return a.text()


if __name__ == "__main__":
    out = sys.argv[1] if len(sys.argv) > 1 else f"cdna_kernels/{NAME}.s"
    open(out, "w").write(generate())
    print("wrote", out)
```

```python
import math, struct, sys

NAME = "concat_heads__linear_attn_block__softmax_full_mha__prompt"

WS_Q = 0x0000000
WS_KV = 0x0400000
WS_PQ = 0x0C00000
WS_O = 0x1000000
WS_KVP = 0x1800000
WS_ZP = 0x1900000
WS_FLAG = 0x1980000
WS_FLAG1 = 0x1990000
WS_EPOCH = 0x19A0000
WS_M = 0x19C0000
WS_SIZE = 0x2000000
sTAG, sF1 = 82, 83


def f32(x):
    return "0x%08x" % struct.unpack("<I", struct.pack("<f", x))[0]


LOG2E = math.log2(math.e)
QSCALE = LOG2E * (32 ** -0.5)


class Asm:
    def __init__(self):
        self.l = []

    def __call__(self, s):
        self.l.append("    " + s)

    def label(self, s):
        self.l.append(s + ":")

    def raw(self, s):
        self.l.append(s)

    def c(self, s):
        self.l.append("    ; " + s)

    def text(self):
        return "\n".join(self.l) + "\n"


def vr(a, n=1):
    return f"v{a}" if n == 1 else f"v[{a}:{a+n-1}]"


def sr(a, n=1):
    return f"s{a}" if n == 1 else f"s[{a}:{a+n-1}]"


def mfma32(d, a, b, c):
    cs = c if isinstance(c, str) else vr(c, 16)
    return f"v_mfma_f32_32x32x16_bf16 {vr(d,16)}, {vr(a,4)}, {vr(b,4)}, {cs}"


def mfma16(d, a, b, c):
    cs = c if isinstance(c, str) else vr(c, 4)
    return f"v_mfma_f32_16x16x32_bf16 {vr(d,4)}, {vr(a,4)}, {vr(b,4)}, {cs}"


def interleave(main, fill, pattern=None):
    out = []
    n = len(main)
    k = 0
    for i, m in enumerate(main):
        out.append(m)
        k2 = pattern[i] if pattern else round(len(fill) * (i + 1) / n)
        for f in fill[k:k2]:
            out += f if isinstance(f, list) else [f]
        k = k2
    for f in fill[k:]:
        out += f if isinstance(f, list) else [f]
    return out


def kernel_header(a, name):
    a.raw(f".globl {name}")
    a.raw(".p2align 8")
    a.raw(f".type {name},@function")
    a.label(name)


def kernel_desc(a, name, nv, ns):
    a.raw(f".amdhsa_kernel {name}")
    a.raw(f"  .amdhsa_next_free_vgpr {nv}")
    a.raw(f"  .amdhsa_next_free_sgpr {max(ns, 90) if OPT['stamp'] != '0' else ns}")
    a.raw(f"  .amdhsa_accum_offset {(nv+3)//4*4}")
    a.raw("  .amdhsa_group_segment_fixed_size 0")
    a.raw("  .amdhsa_kernarg_size 72")
    a.raw("  .amdhsa_user_sgpr_count 2")
    a.raw("  .amdhsa_user_sgpr_kernarg_segment_ptr 1")
    a.raw("  .amdhsa_system_sgpr_workgroup_id_x 1")
    a.raw("  .amdhsa_float_denorm_mode_32 3")
    a.raw("  .amdhsa_float_denorm_mode_16_64 3")
    a.raw(".end_amdhsa_kernel")


def srd(a, d, base, size):
    a(f"s_mov_b32 s{d}, s{base}")
    a(f"s_and_b32 s{d+1}, s{base+1}, 0xffff")
    a(f"s_mov_b32 s{d+2}, {size}")
    a(f"s_mov_b32 s{d+3}, 0x00020000")


OPT = dict(st1=" sc1", st2=" sc1", st3=" sc1", flagm="3", q_pf="1", q_l2pf="0", q_l2init="0", stamp="0", at_nobar="0", at_prio="0", at_sched="0", at_nolds="0")
WS_STAMP = 0x1A00000


def stamp(a, idx, q=False):
    if OPT["stamp"] == "0":
        return
    if idx and (OPT.get("stampQ") or OPT.get("stampA")) and not q:
        return
    a(f"s_memtime s[{60+2*idx}:{61+2*idx}]")
    if idx == 0:
        a("s_memrealtime s[76:77]")
        for r in range(62, 72):
            a(f"s_mov_b32 s{r}, 0")
    a("s_waitcnt lgkmcnt(0)")


def stamp_out(a, kidx, ssrd, vt, swv):
    if OPT["stamp"] == "0":
        return
    a("s_waitcnt vmcnt(0)")
    a("s_memtime s[72:73]")
    a("s_memrealtime s[78:79]")
    a("s_getreg_b32 s74, hwreg(HW_REG_HW_ID)")
    a("s_getreg_b32 s75, hwreg(HW_REG_XCC_ID)")
    a("s_waitcnt lgkmcnt(0)")
    a("s_lshl_b32 s80, s2, 4")
    a(f"s_add_u32 s80, s80, s{swv}")
    a("s_lshl_b32 s80, s80, 6")
    a(f"s_add_u32 s80, s80, {WS_STAMP + kidx*0x100000}")
    a("s_mov_b64 exec, 1")
    a(f"v_mov_b32 v{vt+4}, 0")
    regs = [60, 62, 64, 66, 68, 70, 72, 74, 75, 76, 78, 60]
    for g in range(3):
        for j in range(4):
            a(f"v_mov_b32 v{vt+j}, s{regs[4*g+j]}")
        a(f"buffer_store_dwordx4 v[{vt}:{vt+3}], v{vt+4}, s[{ssrd}:{ssrd+3}], s80 offen offset:{g*16}")
        a("s_nop 1")
```

```python
import sys, os, subprocess, struct
sys.path.insert(0, "cdna_kernels")
import numpy as np
from cdna_launch import AsmKernel, DeviceBuffer, with_harness_metadata, _hip, hip_check, pack_ptr_kernargs
from mb import build

def make(name, body, inner, nchk=16, nvgpr=256, lds_reads=False):
    s = []
    A = s.append
    A("; @launch grid=(256,1,1) block=(512,1,1) lds=65536")
    A('.amdgcn_target "amdgcn-amd-amdhsa--gfx950"'); A(".text"); A(f".globl {name}"); A(".p2align 8"); A(f".type {name},@function"); A(f"{name}:")
    A("  s_load_dwordx4 s[4:7], s[0:1], 0")
    A("  v_lshrrev_b32 v1, 6, v0"); A("  s_nop 1"); A("  v_readfirstlane_b32 s20, v1")
    A("  s_waitcnt lgkmcnt(0)")
    A("  s_mov_b32 s8, s4"); A("  s_mov_b32 s9, s5"); A("  s_mov_b32 s10, 0x400000"); A("  s_mov_b32 s11, 0x00020000")
    A("  s_mov_b32 s12, s6"); A("  s_mov_b32 s13, s7"); A("  s_mov_b32 s14, 0x400000"); A("  s_mov_b32 s15, 0x00020000")
    A("  v_lshlrev_b32 v1, 4, v0")
    for i in range(16):
        A(f"  s_mov_b32 s3, {i*8192}")
        A(f"  buffer_load_dwordx4 v[{128+4*i}:{131+4*i}], v1, s[12:15], s3 offen")
    for i in range(2, 128):
        A(f"  v_mov_b32 v{i}, 0")
    A("  s_waitcnt vmcnt(0)")
    for i in range(8):
        A(f"  ds_write_b128 v1, v[{128+4*i}:{131+4*i}] offset:{i*8192}")
    A("  v_and_b32 v2, 63, v0"); A("  v_lshlrev_b32 v2, 4, v2")
    A("  s_waitcnt lgkmcnt(0)")
    A("  s_barrier")
    A("  s_lshl_b32 s3, s2, 3"); A("  s_add_u32 s3, s3, s20"); A(f"  s_mul_i32 s3, s3, {nchk*16}")
    A(f"  s_mov_b32 s22, {nchk}")
    A("LO:")
    A("  s_memtime s[24:25]"); A("  s_memrealtime s[26:27]")
    A(f"  s_mov_b32 s21, {inner}")
    A(".p2align 6")
    A("LA:")
    s += ["  " + x for x in body]
    A("  s_sub_u32 s21, s21, 1"); A("  s_cmp_lg_u32 s21, 0"); A("  s_cbranch_scc1 LA")
    A("  s_waitcnt lgkmcnt(0)")
    A("  v_mov_b32 v200, s24"); A("  v_mov_b32 v201, s26"); A("  v_mov_b32 v202, 0")
    A("  buffer_store_dwordx2 v[200:201], v202, s[8:11], s3 offen")
    A("  s_add_u32 s3, s3, 16")
    A("  s_sub_u32 s22, s22, 1"); A("  s_cmp_lg_u32 s22, 0"); A("  s_cbranch_scc1 LO")
    A("  s_waitcnt vmcnt(0)")
    A("  s_endpgm")
    A('.section .rodata,"a"'); A(".p2align 6"); A(f".amdhsa_kernel {name}")
    A(f"  .amdhsa_next_free_vgpr {nvgpr}"); A("  .amdhsa_next_free_sgpr 40"); A(f"  .amdhsa_accum_offset {nvgpr}")
    A("  .amdhsa_group_segment_fixed_size 0"); A("  .amdhsa_kernarg_size 16"); A("  .amdhsa_user_sgpr_count 2")
    A("  .amdhsa_user_sgpr_kernarg_segment_ptr 1"); A("  .amdhsa_system_sgpr_workgroup_id_x 1"); A(".end_amdhsa_kernel")
    return "\n".join(s) + "\n"

def run(name, body, inner, flops_per_iter, blk=512, zero=False):
    asm = make(name, body, inner)
    asm2 = with_harness_metadata(asm, name, 2)
    open(f"/tmp/{name}.s", "w").write(asm2)
    r = subprocess.run(["clang", "-x", "assembler", "-target", "amdgcn-amd-amdhsa", "-mcpu=gfx950", f"/tmp/{name}.s", "-o", f"/tmp/{name}.co"], capture_output=True, text=True)
    assert r.returncode == 0, r.stderr
    if not os.path.exists('/dev/kfd'):
        print(name, "ok"); return
    k = AsmKernel(f"/tmp/{name}.co", name)
    out = DeviceBuffer(4 << 20)
    rnd = (np.random.randn(2 << 20).astype(np.float32).view(np.uint32) >> 16).astype(np.uint16)
    if zero: rnd[:] = 0
    src = DeviceBuffer.from_numpy(rnd)
    big = DeviceBuffer(256 << 20)
    for rep in range(3):
        hip_check(_hip.hipMemset(big._ptr, rep, 256 << 20))
        k.launch((256, 1, 1), (blk, 1, 1), pack_ptr_kernargs([out.ptr, src.ptr]), 65536)
        hip_check(_hip.hipDeviceSynchronize())
    o = out.to_numpy(np.uint32, (256 * 8 * 16 * 4,)).reshape(256, 8, 16, 4)[:, :blk // 64].astype(np.int64)
    dc = np.diff(o[..., 0], axis=2) & 0xffffffff; dr = np.diff(o[..., 1], axis=2) & 0xffffffff
    cyc = np.median(dc, axis=(0, 1)); rt = np.mean(dr, axis=(0, 1))
    clk = np.mean(dc, axis=(0, 1)) / rt * 100
    tot_us = rt.sum() / 100
    tf = flops_per_iter * inner * 15 * 256 * (blk // 64) / (tot_us * 1e-6) / 1e12
    print(f"{name:22s} blk{blk} zero={zero} cyc/chk {cyc[0]:.0f} clk MHz: " + " ".join(f"{c:.0f}" for c in clk) + f" | total {tot_us:.1f}us {tf:.0f} TF", flush=True)
    k.unload()

def m32(n, nacc=6):
    return [f"v_mfma_f32_32x32x16_bf16 v[{4+16*(i%nacc)}:{4+16*(i%nacc)+15}], v[{128+4*(i%5)}:{131+4*(i%5)}], v[{160+4*(i%7)}:{163+4*(i%7)}], v[{4+16*(i%nacc)}:{4+16*(i%nacc)+15}]" for i in range(n)]
def m16(n, nacc=24):
    return [f"v_mfma_f32_16x16x32_bf16 v[{4+4*(i%nacc)}:{4+4*(i%nacc)+3}], v[{128+4*(i%5)}:{131+4*(i%5)}], v[{160+4*(i%7)}:{163+4*(i%7)}], v[{4+4*(i%nacc)}:{4+4*(i%nacc)+3}]" for i in range(n)]
def with_lds(ms, per, n):
    o = []; k = 0
    for i, m in enumerate(ms):
        o.append(m)
        want = (i + 1) * n // per
        while k < want:
            o.append(f"ds_read_b128 v[{204+4*(k%12)}:{207+4*(k%12)}], v2 offset:{(k*1024)%65536}"); k += 1
    return o

if __name__ == "__main__":
    F32 = 32768; F16 = 16384
    run("m32_kernel", m32(24), 4, 24 * F32)
    run("m32z_kernel", m32(24), 4, 24 * F32, zero=True)
    run("m16_kernel", m16(48), 4, 48 * F16)
    run("m32w1_kernel", m32(24), 8, 24 * F32, blk=256)
    run("m16w1_kernel", m16(48), 8, 48 * F16, blk=256)
    run("m32l5_kernel", with_lds(m32(24), 6, 5), 4, 24 * F32)
    run("m32l7_kernel", with_lds(m32(24), 12, 7), 4, 24 * F32)
    run("m16l5_kernel", with_lds(m16(48), 12, 5), 4, 48 * F16)
    run("m16l7_kernel", with_lds(m16(48), 24, 7), 4, 48 * F16)
    ex = [f"v_exp_f32 v{4+(i%64)}, v{128+(i%32)}" for i in range(96)]
    run("exp_kernel", ex, 4, 0)
```

```python
from mb4 import *
def reg(p,a,n): return f"{p}[{a}:{a+n-1}]"
def gemm16(order, accp="v", swap=False, accbase=4):
    o=[]
    idx=[(tb,cb) for cb in range(6) for tb in range(4)] if order=="w" else [(tb,cb) for tb in range(4) for cb in range(6)]
    if order=="diag": idx=[((i)%4,(i//4+i)%6) for i in range(24)]
    if order=="snake": idx=[(tb if cb%2==0 else 3-tb,cb) for cb in range(6) for tb in range(4)]
    for tb,cb in idx:
        d=reg(accp,accbase+4*(tb*6+cb),4); x=reg("v",128+4*tb,4); w=reg("v",160+4*cb,4)
        o.append(f"v_mfma_f32_16x16x32_bf16 {d}, {w}, {x}, {d}" if not swap else f"v_mfma_f32_16x16x32_bf16 {d}, {x}, {w}, {d}")
    return o
if __name__ == "__main__":
    F16=16384
    for nm,b in [("wA",gemm16("w")),("wB",gemm16("w",swap=True)),("xA",gemm16("x")),("xB",gemm16("x",swap=True)),("diag",gemm16("diag")),("snake",gemm16("snake")),("snakeB",gemm16("snake",swap=True))]:
        run(f"g_{nm}_kernel", b*2, 8, 48*F16, blk=256)
```

```python
from mb4 import *
from mb8 import gemm16
if __name__ == "__main__":
    F16=16384
    base = with_lds(gemm16("snake")*2, 12, 5)
    for idle in (0, 2, 4, 8, 12, 16, 24):
        run(f"duty{idle}_kernel", base + ["s_nop 15"]*idle, 6, 48*F16, blk=256)
```
